```python
import torch

def _softmax(x, axis=-1):
    return torch.softmax(x, dim=axis)
def _gelu(x):
    return torch.nn.functional.gelu(x, approximate="tanh")
def _silu(x):
    return torch.nn.functional.silu(x)
def _sigmoid(x):
    return torch.sigmoid(x)
def _layernorm(x, axis=-1, eps=1e-5):
    m = x.mean(dim=axis, keepdim=True)
    v = x.var(dim=axis, keepdim=True, unbiased=False)
    return (x - m) / torch.sqrt(v + eps)
def _scatter_add(tgt, idx, src, axis=0):
    return tgt.clone().index_add_(axis, idx, src)
def _segment_sum(src, seg, n):
    out = torch.zeros((n,) + src.shape[1:], dtype=src.dtype)
    return out.index_add_(0, seg, src)
def _pad(x, pw):
    flat = tuple(v for pair in reversed(pw) for v in pair)
    return torch.nn.functional.pad(x, flat)

kernel_name = 'parallel_sum__sliding_local_dilated__dense_activation_silu__prompt'

def setup_inputs():

    _w = (lambda a: (lambda t: t.to(torch.bfloat16) if t.is_floating_point() else t)(torch.as_tensor(a)))
    def _A_setup():
        B, S, D = 1, 2048, 640
        return {
            "x": _w((lambda *s: torch.randn(*s, dtype=torch.bfloat16) * 0.05)(B, S, D)),
            "wqkv": _w((lambda *s: torch.randn(*s, dtype=torch.bfloat16) * 0.05)(D, 3 * D)),
            "wo": _w((lambda *s: torch.randn(*s, dtype=torch.bfloat16) * 0.05)(D, D)),
        }
    _A_in = _A_setup()

    def _B_setup():
        B, S, D, F = 1, 2048, 640, 1536
        return {
            "x": _w((lambda *s: torch.randn(*s, dtype=torch.bfloat16) * 0.05)(B, S, D)),
            "w1": _w((lambda *s: torch.randn(*s, dtype=torch.bfloat16) * 3.2)(D, F) * (D ** -0.5)),
            "w2": _w((lambda *s: torch.randn(*s, dtype=torch.bfloat16) * 0.4)(F, D) * (F ** -0.5)),
        }
    _B_in = _B_setup()

    return {
        "A_x": _A_in["x"],
        "A_wqkv": _A_in["wqkv"],
        "A_wo": _A_in["wo"],
        "B_x": _B_in["x"],
        "B_w1": _B_in["w1"],
        "B_w2": _B_in["w2"],
    }

def reference(A_x, A_wqkv, A_wo, B_x, B_w1, B_w2):
    def _A_ref(x, wqkv, wo):
        B, S, D = x.shape
        H = 32; Dh = D // H
        W, dil = 8, 2
        qkv = (lambda x, *d: x.permute(*d))((x @ wqkv).reshape(B, S, 3, H, Dh), 2, 0, 3, 1, 4)
        q, k, v = qkv[0], qkv[1], qkv[2]
        scale = Dh ** -0.5
        pos = torch.arange(S)
        off = torch.arange(W) * dil
        idx = pos[:, None] - off[None, :]
        mask = idx >= 0
        idx_c = torch.where(mask, idx, 0).reshape(-1)
        kg = k[:, :, idx_c, :].reshape(B, H, S, W, Dh)
        vg = v[:, :, idx_c, :].reshape(B, H, S, W, Dh)
        logits = torch.einsum("bhsd,bhswd->bhsw", q, kg) * scale
        logits = torch.where(mask[None, None, :, :], logits, -1e9)
        attn = _softmax(logits, axis=-1)
        o = torch.einsum("bhsw,bhswd->bhsd", attn, vg)
        return (lambda x, *d: x.permute(*d))(o, 0, 2, 1, 3).reshape(B, S, D) @ wo

    def _B_ref(x, w1, w2):
        h = torch.einsum("bsd,df->bsf", x, w1)
        h = _silu(h)
        out = torch.einsum("bsf,fd->bsd", h, w2)
        return out

    x = A_x
    xn = _layernorm(x, axis=-1)
    return x + _A_ref(xn, A_wqkv, A_wo) + _B_ref(xn, B_w1, B_w2)
```

```python
import re

def v(i, n=1):
    return f"v{i}" if n == 1 else f"v[{i}:{i+n-1}]"
def s(i, n=1):
    return f"s{i}" if n == 1 else f"s[{i}:{i+n-1}]"

_REG = re.compile(r"^-?(?:abs\()?([vsa])(?:(\d+)|\[(\d+):(\d+)\])\)?$")
def regs_of(tok):
    tok = tok.strip()
    if tok in ("vcc",): return {("s", 106), ("s", 107)}
    if tok == "vcc_lo": return {("s", 106)}
    if tok == "vcc_hi": return {("s", 107)}
    if tok == "exec": return {("s", 126), ("s", 127)}
    if tok == "exec_lo": return {("s", 126)}
    if tok == "exec_hi": return {("s", 127)}
    if tok == "m0": return {("s", 124)}
    m = _REG.match(tok)
    if not m: return set()
    f = m.group(1)
    if m.group(2) is not None: return {(f, int(m.group(2)))}
    return {(f, i) for i in range(int(m.group(3)), int(m.group(4)) + 1)}

TRANS = ("v_exp_f32", "v_log_f32", "v_rcp_f32", "v_rsq_f32", "v_sqrt_f32", "v_sin_f32", "v_cos_f32", "v_rcp_iflag_f32")

class Ins:
    __slots__ = ("text", "op", "w", "r", "kind", "srcc", "ab", "passes", "stdata", "dpp", "sread")
    def __init__(self, text):
        self.text = text
        t = text.split(";")[0].strip()
        parts = t.split(None, 1)
        self.op = op = parts[0]
        rest = parts[1] if len(parts) > 1 else ""
        ops = [x.strip() for x in rest.split(",")] if rest else []
        if ops:
            last = ops[-1].split()
            mods = " ".join(last[1:]) if last else ""
            clean = []
            for o in ops:
                tk = o.split()
                if not tk: continue
                clean.append(tk[0])
                if len(tk) > 1: break
            ops = clean
        self.w = set(); self.r = set(); self.srcc = set(); self.ab = set(); self.passes = 0
        self.stdata = set(); self.dpp = ("_dpp" in op) or (" row_" in t) or ("quad_perm" in t); self.sread = set()
        R = [regs_of(o) for o in ops]
        allr = lambda lst: set().union(*lst) if lst else set()
        if op.startswith("v_mfma"):
            self.kind = "mfma"; self.w = R[0]; self.ab = R[1] | R[2]; self.srcc = R[3]; self.r = self.ab | self.srcc
            self.passes = 8 if "32x32" in op else 4
        elif op.startswith("v_cmp"):
            self.kind = "valu"; self.w = R[0]; self.r = allr(R[1:])
        elif op.startswith("v_readfirstlane") or op.startswith("v_readlane"):
            self.kind = "valu"; self.w = R[0]; self.r = allr(R[1:])
        elif op.startswith("v_permlane"):
            self.kind = "valu"; self.w = R[0] | R[1]; self.r = R[0] | R[1]
        elif op.startswith("v_"):
            self.kind = "valu"; self.w = R[0]; self.r = allr(R[1:])
            if op.startswith(("v_fmac", "v_dot2c", "v_writelane")) or self.dpp: self.r |= R[0]
            if op.startswith("v_cndmask") and len(ops) == 3: self.r |= regs_of("vcc")
            if op.startswith(("v_add_co", "v_sub_co", "v_addc_co")): self.w |= R[1]
        elif op.startswith("ds_read"):
            self.kind = "ds"; self.w = R[0]; self.r = allr(R[1:])
        elif op.startswith("ds_"):
            self.kind = "ds"; self.r = allr(R)
        elif op.startswith("buffer_load") or op.startswith("global_load"):
            self.kind = "vmem"
            if " lds" in t or "_lds_" in op:
                self.r = allr(R) | regs_of("m0"); self.kind = "dma"
            else:
                self.w = R[0]; self.r = allr(R[1:])
        elif op.startswith("buffer_store") or op.startswith("buffer_atomic"):
            self.kind = "vmem"; self.r = allr(R)
            if "x3" in op or "x4" in op: self.stdata = R[0]
        elif op.startswith("buffer_"):
            self.kind = "vmem"
        elif op.startswith("s_"):
            self.kind = "salu"
            if op.startswith(("s_cmp", "s_cbranch", "s_branch", "s_waitcnt", "s_barrier", "s_nop", "s_endpgm", "s_setprio", "s_sleep", "s_bitcmp", "s_setpc")):
                self.r = allr(R)
            else:
                self.w = R[0] if R else set(); self.r = allr(R[1:])
        else:
            raise ValueError("unknown instr " + text)
    def states(self):
        if self.op == "s_nop": return int(self.text.split()[1]) + 1
        return 1

def required(p, c):
    need = 0
    vec = lambda S: {x for x in S if x[0] in "va"}
    sca = lambda S: {x for x in S if x[0] == "s"}
    if p.kind == "valu":
        pw = vec(p.w); ps = sca(p.w)
        if c.kind == "mfma" and pw & c.r: need = max(need, 2)
        if c.kind == "valu":
            if c.op.startswith("v_permlane") and pw & c.r: need = max(need, 2)
            if c.dpp and pw & c.r: need = max(need, 2)
            if c.op.startswith(("v_readfirstlane", "v_readlane")) and pw & c.r: need = max(need, 1)
            if p.op.split("_e")[0] in TRANS or p.op in TRANS:
                if pw & c.r and c.op not in TRANS: need = max(need, 1)
            if p.op.startswith("v_dot") and pw & (c.r | c.w):
                if not (c.op == p.op): need = max(need, 3)
            if ps & c.r: need = max(need, 4 if c.op.startswith(("v_readlane", "v_writelane")) else 2)
        if p.op.startswith("v_dot") and c.kind in ("ds", "vmem", "mfma") and pw & c.r: need = max(need, 3)
        if c.kind in ("vmem", "dma") and ps & c.r: need = max(need, 5)
        if c.kind == "salu" and ps & c.r: need = max(need, 1)
    if p.kind == "mfma":
        big = {4: 8, 8: 12}[p.passes]; ov = {4: 6, 8: 10}[p.passes]; war = {4: 3, 8: 7}[p.passes]
        if c.kind == "mfma":
            if p.w & c.ab: need = max(need, big)
            if p.w & c.srcc and not (p.w == c.srcc and p.passes == c.passes): need = max(need, ov)
            if p.w & c.w and not (p.w & c.srcc): need = max(need, ov)
        elif c.kind in ("valu", "ds", "vmem", "dma"):
            if p.w & (c.r | c.w): need = max(need, big)
            if c.kind == "valu" and p.srcc & c.w: need = max(need, war)
    if p.stdata:
        if c.kind == "valu" and p.stdata & c.w: need = max(need, 2)
        elif p.stdata & c.w: need = max(need, 1)
    if p.kind == "salu" and ("s", 124) in p.w and c.kind == "dma": need = max(need, 1)
    return need

class Prog:
    def __init__(self):
        self.items = []
    def __call__(self, text):
        for ln in text.split("\n"):
            ln = ln.strip()
            if not ln: continue
            if ln.startswith(";") or ln.endswith(":") or ln.startswith("."):
                self.items.append(ln)
            else:
                self.items.append(Ins(ln))
    def label(self, name): self.items.append(name + ":")
    def pad(self):
        out = []
        def need_before(hist, c):
            n = 0; dist = 0
            for p in reversed(hist):
                if dist >= 12: break
                r = required(p, c)
                if r > dist: n = max(n, r - dist)
                dist += p.states()
            return n
        hist = []
        for it in self.items:
            if isinstance(it, Ins):
                n = need_before(hist, it)
                if n:
                    nop = Ins(f"s_nop {n-1}"); out.append(nop); hist.append(nop)
                out.append(it); hist.append(it)
                if it.op in ("s_branch", "s_endpgm", "s_setpc_b64"): hist = []
                hist = hist[-16:]
            else:
                out.append(it)
        self.items = out
        labels = {it[:-1]: i for i, it in enumerate(out) if isinstance(it, str) and it.endswith(":")}
        for i, it in enumerate(out):
            if isinstance(it, Ins) and it.op.startswith(("s_cbranch", "s_branch")):
                tgt = it.text.split()[1]
                if tgt not in labels: continue
                hist = [x for x in out[max(0, i-16):i+1] if isinstance(x, Ins)]
                k = labels[tgt]; cnt = 0
                while k < len(out) and cnt < 12:
                    x = out[k]
                    if isinstance(x, Ins):
                        n = need_before(hist, x)
                        if n: raise RuntimeError(f"hazard across branch {it.text} -> {x.text} needs {n}")
                        hist.append(x); cnt += 1
                        if x.op in ("s_branch", "s_endpgm"): break
                    k += 1
    def text(self):
        return "\n".join(("    " + it.text) if isinstance(it, Ins) else it for it in self.items) + "\n"

class RA:
    def __init__(self, lo, hi):
        self.free = set(range(lo, hi))
    def alloc(self, n, align=2):
        if n == 1: align = 1
        for b in sorted(self.free):
            if b % align == 0 and all((b + i) in self.free for i in range(n)):
                for i in range(n): self.free.remove(b + i)
                return b
        raise RuntimeError(f"out of registers (n={n}, free={sorted(self.free)})")
    def release(self, b, n=1):
        for i in range(n):
            assert (b + i) not in self.free, b + i
            self.free.add(b + i)

class LgkmTracker:
    def __init__(self): self.q = []
    def issue(self, tag): self.q.append(tag)
    def need(self, tags):
        idx = [i for i, t in enumerate(self.q) if t in tags]
        if not idx: return None
        last = max(idx)
        n = len(self.q) - 1 - last
        self.q = self.q[last+1:]
        assert n <= 15, n
        return n
```

```python
import sys
from asmlib import *

NAME = "parallel_sum__sliding_local_dilated__dense_activation_silu__prompt"
STAMP = "--stamp" in sys.argv

sX, sWQKV, sWO, sW1, sW2, sOUT, sDBG, sWS = 4, 6, 8, 12, 14, 16, 18, 20
sWAVE, sG = 22, 23
SX, SW, SM, SWS, SW2, SOUT = 24, 28, 32, 36, 40, 44
sJ, sT0, sT1, sT2, sT3 = 48, 49, 50, 51, 52
sI, sXCD = 53, 54
X_BYTES, WQKV_BYTES, WO_BYTES, W1_BYTES, W2_BYTES = 2621440, 2457600, 819200, 1966080, 1966080
ACT_BYTES = 34 * 128 * 2048
STAMP_OFF = 16 << 20

ST_NM, ST_A, ST_SD, CS, XCH = 0, 640, 1280, 1920, 3072
RING0 = 23552
QXS, QWS = 18432, 15360
QXR = RING0; QWR = QXR + 3 * QXS
FXS, FWS = 16384, 12288
FXR = RING0; FWR = FXR + 3 * FXS
LDS1 = QWR + 5 * QWS
assert LDS1 <= 163840

LOG2E = 1.4426950408889634
def fbits(x):
    import struct
    return "0x%08x" % struct.unpack("<I", struct.pack("<f", x))[0]

def srd(p, d, ptr, nbytes):
    p(f"s_mov_b32 s{d}, s{ptr}\ns_mov_b32 s{d+1}, s{ptr+1}\ns_mov_b32 s{d+2}, {nbytes}\ns_mov_b32 s{d+3}, 0x20000")

stamp_n = [0]
def stamp(p, idx):
    if STAMP:
        p(f"s_memtime s[{80+2*idx}:{81+2*idx}]")
def stamp_flush(p, n, base):
    if not STAMP: return
    p("s_waitcnt lgkmcnt(0)")
    p("s_memrealtime s[78:79]")
    p("s_waitcnt lgkmcnt(0)")
    p("s_mov_b64 exec, -1")
    p("v_mov_b32 v1, 0")
    for i in range(n):
        p(f"v_writelane_b32 v1, s{80+2*i}, {i}")
    p("v_writelane_b32 v1, s78, 15")
    p("v_writelane_b32 v1, s76, 14")
    srd(p, 72, sWS, 0x10000000)
    p(f"s_lshl_b32 s70, s2, 3\ns_add_u32 s70, s70, s{sWAVE}\ns_lshl_b32 s70, s70, 6\ns_add_u32 s70, s70, {base}")
    p("v_mbcnt_lo_u32_b32 v2, -1, 0\nv_mbcnt_hi_u32_b32 v2, -1, v2\nv_lshlrev_b32 v2, 2, v2")
    p("s_mov_b64 exec, 0xffff")
    p("buffer_store_dword v1, v2, s[72:75], s70 offen")
    p("s_waitcnt vmcnt(0)")

def prologue(p, end):
    p(f"s_cmp_ge_u32 s2, 256\ns_cbranch_scc1 {end}")
    if STAMP: p("s_memrealtime s[76:77]")
    stamp(p, 0)
    p("s_load_dwordx16 s[4:19], s[0:1], 0\ns_load_dwordx2 s[20:21], s[0:1], 64")
    p(f"v_lshrrev_b32 v1, 6, v0\nv_readfirstlane_b32 s{sWAVE}, v1\nv_and_b32 v0, 63, v0")
    p(f"s_and_b32 s{sXCD}, s2, 7\ns_lshr_b32 s{sI}, s2, 3")

def stats_piece(p, base, S, Q, sOnes):
    for d in range(4):
        p(f"v_dot2c_f32_bf16 v{S}, s{sOnes}, v{base+d}")
        p(f"v_dot2c_f32_bf16 v{Q}, v{base+d}, v{base+d}")

def loader1(p, role):
    Q = role == "Q"
    XS, WS_, XR, WR = (QXS, QWS, QXR, QWR) if Q else (FXS, FWS, FXR, FWR)
    HALF = XS // 2
    ROWB = 3840 if Q else 3072
    CPR = 30 if Q else 24
    NP = 3 if Q else 2
    L = f"L{role}L"
    sWk, sWkEnd, sWl, sWlEnd, sXk, sXl, sXlEnd, sR0, sR1, sRM0, sRM1, sMsk, sSl, sOnes, sCnt, sW = range(55, 71)
    vWo = [10, 11, 12, 13]; vXa = [14, 15]; vXb = [16, 17]; vM = [18, 19]; vL16 = 20; vSa = 21
    vD = 24
    vS = [[40 + 2 * (hh * NP + q) for q in range(NP)] for hh in range(2)]
    p(f"s_sub_u32 s{sW}, s{sWAVE}, 4")
    nper = 4 if Q else 3
    p(f"s_mul_i32 s{sT0}, s{sW}, {64*nper}")
    p(f"s_mov_b32 s{sT1}, {2185 if Q else 2731}")
    for m in range(nper):
        n_, rho, ch, k_, t_ = 1, 2, 3, 4, 5
        p(f"v_add_u32 v{n_}, s{sT0}, v0")
        if m: p(f"v_add_u32 v{n_}, {64*m}, v{n_}")
        p(f"v_mul_u32_u24 v{rho}, s{sT1}, v{n_}\nv_lshrrev_b32 v{rho}, 16, v{rho}")
        p(f"v_mul_u32_u24 v{t_}, {CPR}, v{rho}\nv_sub_u32 v{ch}, v{n_}, v{t_}")
        p(f"v_bfe_u32 v{k_}, v{rho}, 2, 2\nv_lshlrev_b32 v{k_}, 3, v{k_}")
        p(f"v_lshrrev_b32 v{t_}, 4, v{rho}\nv_lshl_add_u32 v{k_}, v{t_}, 2, v{k_}")
        p(f"v_and_b32 v{t_}, 3, v{rho}\nv_add_u32 v{k_}, v{k_}, v{t_}")
        p(f"v_mul_u32_u24 v{k_}, {ROWB}, v{k_}")
        if Q:
            p(f"v_mul_u32_u24 v{t_}, 205, v{ch}\nv_lshrrev_b32 v{t_}, 11, v{t_}")
            p(f"v_mul_u32_u24 v{t_}, 1120, v{t_}\nv_add_u32 v{k_}, v{k_}, v{t_}")
        else:
            p(f"v_bfe_u32 v{t_}, v{rho}, 1, 2\nv_lshlrev_b32 v{t_}, 1, v{t_}\nv_xor_b32 v{ch}, v{ch}, v{t_}")
        p(f"v_lshl_add_u32 v{vWo[m]}, v{ch}, 4, v{k_}")
        if 0 < m < 3: p(f"v_subrev_u32 v{vWo[m]}, {1024*m}, v{vWo[m]}")
    p(f"v_lshrrev_b32 v1, 3, v0\nv_mul_u32_u24 v1, 1280, v1\nv_lshrrev_b32 v2, 4, v0\nv_and_b32 v3, 7, v0\nv_xor_b32 v2, v2, v3")
    p(f"v_lshl_add_u32 v{vXa[0]}, v2, 4, v1")
    if Q:
        p(f"v_xor_b32 v{vXa[1]}, 64, v{vXa[0]}")
        p(f"v_add_u32 v{vXb[0]}, 9216, v{vXa[1]}\nv_add_u32 v{vXb[1]}, 9216, v{vXa[0]}")
    else:
        p(f"v_xor_b32 v{vXb[0]}, 64, v{vXa[0]}\nv_add_u32 v{vXb[0]}, 9216, v{vXb[0]}")
        vXa[1] = vXa[0]; vXb[1] = vXb[0]
    p(f"v_lshlrev_b32 v{vL16}, 4, v0")
    for hh in range(2):
        for q in range(NP):
            p(f"v_mov_b32 v{vS[hh][q]}, 0\nv_mov_b32 v{vS[hh][q]+1}, 0")
    p(f"s_mov_b32 s{sOnes}, 0x3f803f80")
    p(f"s_mul_i32 s{sT0}, s{sG}, 5\ns_lshr_b32 s{sT0}, s{sT0}, 1\ns_mul_i32 s{sT1}, s{sJ}, 3\ns_add_u32 s{sT0}, s{sT0}, s{sT1}")
    if not Q: p(f"s_add_u32 s{sT0}, s{sT0}, 4")
    p(f"s_mul_i32 s{sT1}, s{sT0}, 205\ns_lshr_b32 s{sT1}, s{sT1}, 11\ns_mul_i32 s{sT1}, s{sT1}, 10\ns_sub_u32 s{sT0}, s{sT0}, s{sT1}")
    if "--norot" in sys.argv: p(f"s_mov_b32 s{sT0}, 0")
    p(f"s_lshl_b32 s{sXk}, s{sT0}, 7")
    p(f"s_mul_i32 s{sT1}, s{sJ}, {160 if Q else 384}")
    p(f"s_mul_i32 s{sWk}, s{sT0}, {64*ROWB}\ns_add_u32 s{sWk}, s{sWk}, s{sT1}")
    p(f"s_add_u32 s{sWkEnd}, s{sT1}, {640*ROWB}")
    p(f"s_mul_i32 s{sT1}, s{sW}, {1024*nper}\ns_add_u32 s{sWl}, s{sT1}, {WR}\ns_add_u32 s{sWlEnd}, s{sWl}, {5*WS_}")
    p(f"s_lshl_b32 s{sT1}, s{sW}, 11\ns_add_u32 s{sXl}, s{sT1}, {XR}\ns_add_u32 s{sXlEnd}, s{sXl}, {3*XS}\ns_mov_b32 s{sSl}, s{sXl}")
    p(f"s_lshl_b32 s{sT0}, s{sG}, 7\ns_lshl_b32 s{sT1}, s{sW}, 4\ns_add_u32 s{sT1}, s{sT1}, s{sT0}")
    if Q:
        p(f"s_sub_i32 s{sT2}, s{sT1}, 16\ns_max_i32 s{sT2}, s{sT2}, 0\ns_mul_i32 s{sR0}, s{sT2}, 1280")
        p(f"s_add_u32 s{sT2}, s{sT1}, 56\ns_mul_i32 s{sR1}, s{sT2}, 1280")
        p(f"s_add_u32 s{sT2}, s{sT0}, 48\ns_mul_i32 s{sRM0}, s{sT2}, 1280\ns_add_u32 s{sRM1}, s{sRM0}, {72*1280}")
        p(f"s_cmp_eq_u32 s{sW}, 0\ns_cselect_b32 s{sMsk}, 0xffffff00, -1")
        p(f"s_cmp_eq_u32 s{sW}, 3\ns_cselect_b64 vcc, -1, 0")
        p(f"v_cndmask_b32 v{vM[0]}, v{vWo[3]}, v{vXa[0]}, vcc\nv_cndmask_b32 v{vM[1]}, v{vWo[3]}, v{vXa[1]}, vcc")
        p(f"v_mov_b32 v4, s{sOnes}\nv_mov_b32 v5, v4\nv_mov_b32 v6, v4\nv_mov_b32 v7, v4")
        p(f"s_not_b32 exec_lo, s{sMsk}\ns_mov_b32 exec_hi, 0")
        for sl in range(3):
            p(f"ds_write_b128 v{vL16}, v[4:7] offset:{XR + sl*XS}")
        p("s_mov_b64 exec, -1")
    else:
        p(f"s_mul_i32 s{sR0}, s{sT1}, 1280\ns_add_u32 s{sR1}, s{sR0}, {64*1280}")
    p("s_waitcnt lgkmcnt(0)")
    srd(p, SX, sX, X_BYTES)
    srd(p, SW, sWQKV if Q else sW1, WQKV_BYTES if Q else W1_BYTES)
    if Q:
        p(f"s_cmp_eq_u32 s{sW}, 3")
        p(f"s_cselect_b32 s{SM}, s{sX}, s{sWQKV}\ns_cselect_b32 s{SM+1}, s{sX+1}, s{sWQKV+1}")
        p(f"s_cselect_b32 s{SM+2}, s{SX+2}, s{SW+2}\ns_mov_b32 s{SM+3}, 0x20000")
    sR = [sR0, sR1]; sRM = [sRM0, sRM1]

    def x_issue(hh):
        out = []
        a = [f"s_add_u32 s{sT0}, s{sR[hh]}, s{sXk}", f"s_add_u32 m0, s{sXl}, {hh*HALF}"]
        if Q and hh == 0: a.append(f"s_mov_b32 exec_lo, s{sMsk}")
        a.append(f"buffer_load_dwordx4 v{vXa[hh]}, s[{SX}:{SX+3}], s{sT0} offen lds")
        if Q and hh == 0: a.append("s_mov_b32 exec_lo, -1")
        out.append(a)
        out.append([f"buffer_load_dwordx4 v{vXb[hh]}, s[{SX}:{SX+3}], s{sT0} offen offset:1024 lds"])
        return out
    def w_issue():
        out = [[f"s_mov_b32 m0, s{sWl}", f"buffer_load_dwordx4 v{vWo[0]}, s[{SW}:{SW+3}], s{sWk} offen lds"]]
        for m in (1, 2):
            out.append([f"buffer_load_dwordx4 v{vWo[m]}, s[{SW}:{SW+3}], s{sWk} offen offset:{1024*m} lds"])
        return out
    def m_issue(hh):
        return [[f"s_add_u32 s{sT0}, s{sRM[hh]}, s{sXk}", f"s_add_u32 s{sT1}, s{sXl}, {hh*HALF+2048}", f"s_add_u32 s{sT2}, s{sWl}, 3072",
                 f"s_cmp_eq_u32 s{sW}, 3", f"s_cselect_b32 s{sT0}, s{sT0}, s{sWk}", f"s_cselect_b32 m0, s{sT1}, s{sT2}",
                 f"buffer_load_dwordx4 v{vM[hh]}, s[{SM}:{SM+3}], s{sT0} offen lds"]]
    def adv_w():
        return [f"s_add_u32 s{sWk}, s{sWk}, {32*ROWB}", f"s_sub_u32 s{sT0}, s{sWk}, {640*ROWB}", f"s_cmp_ge_u32 s{sWk}, s{sWkEnd}", f"s_cselect_b32 s{sWk}, s{sT0}, s{sWk}",
                f"s_add_u32 s{sWl}, s{sWl}, {WS_}", f"s_sub_u32 s{sT0}, s{sWl}, {5*WS_}", f"s_cmp_ge_u32 s{sWl}, s{sWlEnd}", f"s_cselect_b32 s{sWl}, s{sT0}, s{sWl}"]
    def adv_x():
        return [f"s_add_u32 s{sXk}, s{sXk}, 128", f"s_cmp_ge_u32 s{sXk}, 1280", f"s_cselect_b32 s{sXk}, 0, s{sXk}",
                f"s_add_u32 s{sXl}, s{sXl}, {XS}", f"s_sub_u32 s{sT0}, s{sXl}, {3*XS}", f"s_cmp_ge_u32 s{sXl}, s{sXlEnd}", f"s_cselect_b32 s{sXl}, s{sT0}, s{sXl}"]
    def group(hh):
        ch = x_issue(hh) + w_issue() + (m_issue(hh) if Q else [])
        ch[-1] = ch[-1] + adv_w() + (adv_x() if hh == 1 else [])
        return ch
    def stats_reads(hh):
        a = [f"v_add_u32 v{vSa}, s{sSl}, v{vL16}"]
        for q in range(NP):
            a.append(f"ds_read_b128 v[{vD+4*q}:{vD+4*q+3}], v{vSa} offset:{hh*HALF + 1024*q}")
        if hh == 1:
            a += [f"s_add_u32 s{sSl}, s{sSl}, {XS}", f"s_sub_u32 s{sT0}, s{sSl}, {3*XS}", f"s_cmp_ge_u32 s{sSl}, s{sXlEnd}", f"s_cselect_b32 s{sSl}, s{sT0}, s{sSl}"]
        return a
    def stats_math(hh, q):
        a = [f"s_waitcnt lgkmcnt({NP-1-q})"]
        for d in range(4):
            a.append(f"v_dot2c_f32_bf16 v{vS[hh][q]}, s{sOnes}, v{vD+4*q+d}")
            a.append(f"v_dot2c_f32_bf16 v{vS[hh][q]+1}, v{vD+4*q+d}, v{vD+4*q+d}")
        return a
    def emit(lines):
        for l in lines: p(l)
    def iteration(chunks, shh):
        if shh is not None: emit(stats_reads(shh))
        q = 0
        for n, c in enumerate(chunks):
            emit(c)
            if shh is not None and n >= 1 and q < NP:
                emit(stats_math(shh, q)); q += 1
        while shh is not None and q < NP:
            emit(stats_math(shh, q)); q += 1
    GI = 6 if Q else 5
    for c in x_issue(0): emit(c)
    if Q:
        p(f"s_cmp_lg_u32 s{sW}, 3\ns_cbranch_scc1 {L}_p0")
        emit(m_issue(0)[0])
        p.label(f"{L}_p0")
    for n in range(5):
        for c in group((n + 1) & 1): emit(c)
    stamp(p, 1)
    p(f"s_waitcnt vmcnt({4*GI})\ns_barrier")
    stamp(p, 2)
    iteration([], 0); iteration([], 1)
    p(f"s_waitcnt vmcnt({3*GI})\ns_barrier")
    iteration([], 0)
    p(f"s_mov_b32 s{sCnt}, 7")
    p.label(f"{L}_loop")
    for e in (1, 0):
        p(f"s_waitcnt vmcnt({2*GI})\ns_barrier")
        iteration(group((e + 1) & 1), e)
    p(f"s_sub_u32 s{sCnt}, s{sCnt}, 1\ns_cmp_lg_u32 s{sCnt}, 0\ns_cbranch_scc1 {L}_loop")
    p(f"s_waitcnt vmcnt({2*GI})\ns_barrier")
    last = w_issue()
    iteration(last, 1)
    if Q:
        p(f"s_cmp_eq_u32 s{sW}, 3\ns_cbranch_scc1 {L}_p1")
        p(f"s_add_u32 m0, s{sWl}, 3072\nbuffer_load_dwordx4 v{vWo[3]}, s[{SW}:{SW+3}], s{sWk} offen lds")
        p.label(f"{L}_p1")
    p(f"s_waitcnt vmcnt({GI+3})\ns_barrier")
    iteration([], 0)
    p(f"s_waitcnt vmcnt(3)\ns_barrier")
    iteration([], 1)
    p(f"s_waitcnt vmcnt(0)\ns_barrier")
    accs = [vS[hh][q] + z for hh in range(2) for q in range(NP) for z in range(2)]
    for ctl in ("quad_perm:[1,0,3,2]", "quad_perm:[2,3,0,1]", "row_half_mirror"):
        for r in accs:
            p(f"v_add_f32_dpp v{r}, v{r}, v{r} {ctl} row_mask:0xf bank_mask:0xf")
    p(f"s_mov_b32 s{sT2}, 0x01010101\ns_mov_b32 s{sT3}, 0x01010101")
    assert sT2 % 2 == 1
    gS, gQ = 2, 3
    p(f"v_mov_b32 v{gS}, v{vS[0][0]}\nv_mov_b32 v{gQ}, v{vS[0][0]+1}")
    for idx in range(1, 2 * NP):
        hh, q = divmod(idx, NP)
        p(f"s_lshl_b32 exec_lo, s{sT2}, {idx}\ns_lshl_b32 exec_hi, s{sT2}, {idx}")
        p(f"v_mov_b32 v{gS}, v{vS[hh][q]}\nv_mov_b32 v{gQ}, v{vS[hh][q]+1}")
    p("s_mov_b64 exec, -1")
    inv = fbits(1.0 / 640)
    p(f"v_mul_f32 v{gS}, {inv}, v{gS}\nv_mul_f32 v{gQ}, {inv}, v{gQ}")
    p(f"v_fma_f32 v{gQ}, -v{gS}, v{gS}, v{gQ}\nv_max_f32 v{gQ}, 0, v{gQ}")
    p(f"v_cvt_pk_bf16_f32 v4, v{gS}, v{gQ}")
    p(f"v_lshlrev_b32 v5, 16, v4\nv_and_b32 v6, 0xffff0000, v4")
    p(f"v_add_f32 v6, {fbits(1e-5)}, v6\nv_cvt_pk_bf16_f32 v6, v6, v6\nv_and_b32 v6, 0xffff0000, v6")
    p(f"v_sqrt_f32 v6, v6\nv_cvt_pk_bf16_f32 v6, v6, v6\nv_and_b32 v6, 0xffff0000, v6")
    p(f"v_rcp_f32 v7, v6\nv_xor_b32 v5, 0x80000000, v5")
    if not Q: p(f"v_mul_f32 v7, {fbits(-LOG2E)}, v7")
    p(f"v_and_b32 v8, 7, v0\nv_lshrrev_b32 v9, 3, v0\nv_lshl_add_u32 v9, v8, 3, v9")
    p(f"v_cmp_le_u32 vcc, {NP}, v8\nv_cndmask_b32 v8, 0, 48, vcc" .replace("v_cndmask_b32 v8, 0, 48, vcc", "v_cndmask_b32_e64 v8, 0, 48, vcc"))
    p(f"s_lshl_b32 s{sT0}, s{sW}, 4\nv_add3_u32 v9, v9, v8, s{sT0}\nv_lshlrev_b32 v9, 2, v9")
    if Q:
        p(f"s_cmp_eq_u32 s{sW}, 3\ns_cselect_b32 s{sT0}, 0x3f3f3f3f, 0x1b1b1b1b".replace("0x3f3f3f3f, 0x1b1b1b1b", "63, 27"))
        p(f"s_mul_i32 s{sT0}, s{sT0}, 0x01010101")
    else:
        p(f"s_mov_b32 s{sT0}, 0x0f0f0f0f")
    p(f"s_mov_b32 exec_lo, s{sT0}\ns_mov_b32 exec_hi, s{sT0}")
    p(f"ds_write_b32 v9, v5 offset:{ST_NM}\nds_write_b32 v9, v7 offset:{ST_A}")
    if not Q: p(f"ds_write_b32 v9, v6 offset:{ST_SD}")
    p("s_mov_b64 exec, -1")
    p("s_waitcnt lgkmcnt(0)\ns_barrier")
    stamp(p, 3)
    p("s_barrier")
    if Q: p("s_barrier")
    stamp_flush(p, 4, STAMP_OFF)
    p("s_endpgm")

def mfma(d, a, b, c=None):
    cc = v(d, 4) if c is None else c
    return f"v_mfma_f32_16x16x32_bf16 {v(d,4)}, {v(a,4)}, {v(b,4)}, {cc}"

def steady_loop(p, body_fn, label, cnt_sgpr, iters):
    tr = LgkmTracker()
    body_fn(lambda s_: None, tr, 0)
    lines = []
    body_fn(lines.append, tr, 1)
    p(f"s_mov_b32 s{cnt_sgpr}, {iters}")
    p.label(label)
    for l in lines: p(l)
    p(f"s_sub_u32 s{cnt_sgpr}, s{cnt_sgpr}, 1\ns_cmp_lg_u32 s{cnt_sgpr}, 0\ns_cbranch_scc1 {label}")

def xfrag_lane(p, d0, d1):
    p(f"v_and_b32 v1, 15, v0\nv_lshrrev_b32 v2, 4, v0\nv_lshrrev_b32 v3, 1, v1\nv_xor_b32 v2, v2, v3")
    p(f"v_lshlrev_b32 v1, 7, v1\nv_lshl_add_u32 v{d0}, v2, 4, v1\nv_xor_b32 v{d1}, 64, v{d0}")

def computeQ(p, w):
    L = f"LQC{w}"
    ACC = 16; H = 136; BW = 152; XF = 176
    acc = lambda t, c: ACC + (t * 15 + c) * 4
    vW, vWl, vX, vXl = 4, 5, [6, 7], [8, 9]
    sWs, sXs, sCnt = 55, 56, 57
    NB, LA = 6, 5
    xf = lambda e, i: XF + (e * 3 + i) * 4
    xoff = [(16 + 32 * w) * 128, (32 + 32 * w) * 128, 0]
    xfrag_lane(p, vXl[0], vXl[1])
    p(f"v_lshrrev_b32 v1, 2, v0\nv_mul_u32_u24 v1, 480, v1\nv_and_b32 v2, 3, v0\nv_lshl_add_u32 v{vWl}, v2, 3, v1")
    p(f"s_mov_b32 s{sWs}, {QWR}\ns_mov_b32 s{sXs}, {QXR}")
    p(f"v_add_u32 v{vW}, s{sWs}, v{vWl}\nv_add_u32 v{vX[0]}, s{sXs}, v{vXl[0]}\nv_add_u32 v{vX[1]}, s{sXs}, v{vXl[1]}")
    for r in range(ACC, BW): p(f"v_mov_b32 v{r}, 0")
    p("s_waitcnt lgkmcnt(0)")
    srd(p, SWS, sWS, ACT_BYTES)
    p("s_barrier")
    stamp(p, 1)
    def bread(slot, c, j): return f"ds_read_b64_tr_b16 {v(BW + 4*slot + 2*j, 2)}, v{vW} offset:{c*32 + j*7680}"
    for i in range(3): p(f"ds_read_b128 {v(xf(0,i),4)}, v{vX[0]} offset:{xoff[i]}")
    for c in range(LA):
        p(bread(c, c, 0)); p(bread(c, c, 1))
    p("s_waitcnt lgkmcnt(0)")
    def body(em, tr, it):
        for e in range(2):
            for c in range(15):
                n = 15 * e + c; slot = n % NB
                if c == 15 - LA:
                    em(f"s_add_u32 s{sWs}, s{sWs}, {QWS}"); em(f"s_cmp_ge_u32 s{sWs}, {QWR + 5*QWS}"); em(f"s_cselect_b32 s{sWs}, {QWR}, s{sWs}")
                    em(f"v_add_u32 v{vW}, s{sWs}, v{vWl}")
                    if e == 1:
                        em(f"s_add_u32 s{sXs}, s{sXs}, {QXS}"); em(f"s_cmp_ge_u32 s{sXs}, {QXR + 3*QXS}"); em(f"s_cselect_b32 s{sXs}, {QXR}, s{sXs}")
                        em(f"v_add_u32 v{vX[0]}, s{sXs}, v{vXl[0]}"); em(f"v_add_u32 v{vX[1]}, s{sXs}, v{vXl[1]}")
                    em("s_barrier")
                tags = {("b", it, n, 0), ("b", it, n, 1)}
                if c == 0: tags |= {("x", it, e, i) for i in range(3)}
                k = tr.need(tags)
                if k is not None: em(f"s_waitcnt lgkmcnt({k})")
                b = BW + 4 * slot
                mm = lambda d, x: mfma(d, b, x) if c < 10 else mfma(d, x, b)
                n2 = n + LA; it2 = it + n2 // 30; n2 %= 30; c2 = n2 % 15
                em(mm(acc(0, c), xf(e, 0)))
                em(bread(n2 % NB, c2, 0)); tr.issue(("b", it2, n2, 0))
                em(mm(acc(1, c), xf(e, 1)))
                em(bread(n2 % NB, c2, 1)); tr.issue(("b", it2, n2, 1))
                if c % 4 == w: em(mm(H + 4 * (c // 4), xf(e, 2)))
                if 15 - LA <= c < 15 - LA + 3:
                    i = c - (15 - LA); e2 = 1 - e
                    em(f"ds_read_b128 {v(xf(e2,i),4)}, v{vX[e2]} offset:{xoff[i]}"); tr.issue(("x", it + e, e2, i))
    steady_loop(p, body, f"{L}_loop", sCnt, 10)
    stamp(p, 2)
    vG16, vL4, vL8 = 1, 2, 3
    p(f"v_and_b32 v{vG16}, 0x30, v0\nv_and_b32 v{vL4}, 15, v0\nv_lshlrev_b32 v{vL4}, 2, v{vL4}\nv_lshlrev_b32 v{vL8}, 3, v0")
    p("s_waitcnt lgkmcnt(0)")
    hc = [c for c in range(15) if c % 4 == w]
    p("s_mov_b32 exec_lo, 0x00010001\ns_mov_b32 exec_hi, 0x00010001")
    for c in hc:
        if c < 10: p(f"ds_write_b128 v{vG16}, {v(H + 4*(c//4), 4)} offset:{CS + 64*c}")
    p("s_mov_b64 exec, 0xffff")
    for c in hc:
        if c >= 10: p(f"ds_write_b32 v{vL4}, v{H + 4*(c//4)} offset:{CS + 64*c}")
    p("s_mov_b64 exec, -1")
    p("s_waitcnt lgkmcnt(0)\ns_barrier")
    ra = RA(BW, 256)
    for r in range(4, 16): ra.free.add(r)
    row0 = [16 + 32 * w, 32 + 32 * w, 0]
    na = [ra.alloc(2) for _ in range(3)]
    nq = [ra.alloc(4) for _ in range(3)]; aq = [ra.alloc(4) for _ in range(3)]
    csq = {c: ra.alloc(4) for c in range(5, 10)}
    csv = {}
    csv_base = ra.alloc(6)
    for c in range(10, 15): csv[c] = csv_base + c - 10
    for t in (2, 1, 0):
        p(f"ds_read_b32 v{na[t]}, v{vL4} offset:{ST_NM + 4*row0[t]}\nds_read_b32 v{na[t]+1}, v{vL4} offset:{ST_A + 4*row0[t]}")
    for c in range(5, 10): p(f"ds_read_b128 {v(csq[c],4)}, v{vG16} offset:{CS + 64*c}")
    p("s_waitcnt lgkmcnt(4)")
    for c in range(10, 15): p(f"ds_read_b32 v{csv[c]}, v{vL4} offset:{CS + 64*c}")
    for t in (2, 1, 0):
        p(f"ds_read_b128 {v(nq[t],4)}, v{vG16} offset:{ST_NM + 4*row0[t]}\nds_read_b128 {v(aq[t],4)}, v{vG16} offset:{ST_A + 4*row0[t]}")
    p("s_waitcnt lgkmcnt(0)")
    def fold_sw(a_, cs, t, dst, scale=True):
        for h in (0, 2):
            p(f"v_pk_fma_f32 {v(a_+h,2)}, {v(cs+h,2)}, {v(na[t],2)}, {v(a_+h,2)} op_sel_hi:[1,0,1]")
        if scale:
            for h in (0, 2):
                p(f"v_pk_mul_f32 {v(a_+h,2)}, {v(a_+h,2)}, {v(na[t],2)} op_sel:[0,1] op_sel_hi:[1,1]")
        p(f"v_cvt_pk_bf16_f32 v{dst}, v{a_}, v{a_+1}\nv_cvt_pk_bf16_f32 v{dst+1}, v{a_+2}, v{a_+3}")
    def fold_un(a_, c, t, dst):
        r = csv[c]; pr = r & ~1; sel = r & 1
        for h in (0, 2):
            p(f"v_pk_fma_f32 {v(a_+h,2)}, {v(nq[t]+h,2)}, {v(pr,2)}, {v(a_+h,2)} op_sel:[0,{sel},0] op_sel_hi:[1,{sel},1]")
        for h in (0, 2):
            p(f"v_pk_mul_f32 {v(a_+h,2)}, {v(a_+h,2)}, {v(aq[t]+h,2)}")
        p(f"v_cvt_pk_bf16_f32 v{dst}, v{a_}, v{a_+1}\nv_cvt_pk_bf16_f32 v{dst+1}, v{a_+2}, v{a_+3}")
    for c in hc:
        if c < 5: continue
        a_ = H + 4 * (c // 4)
        if c < 10: fold_sw(a_, csq[c], 2, a_)
        else: fold_un(a_, c, 2, a_)
        p(f"ds_write_b64 v{vL8}, {v(a_,2)} offset:{XCH + (c-5)*512}")
    K = [None, ra.alloc(10)]
    V = [ra.alloc(6) for _ in range(5)]
    for c in range(5, 10):
        fold_sw(acc(1, c), csq[c], 1, K[1] + 2 * (c - 5))
        if w < 3: p(f"ds_write_b64 v{vL8}, {v(K[1] + 2*(c-5),2)} offset:{XCH + (w+1)*5120 + (c-5)*512}")
    for c in range(10, 15):
        fold_un(acc(1, c), c, 1, V[c-10] + 4)
        if w < 3: p(f"ds_write_b64 v{vL8}, {v(V[c-10]+4,2)} offset:{XCH + (w+1)*5120 + (c-5)*512}")
    ra.release(acc(1, 5), 40)
    csqq = {c: ra.alloc(4) for c in range(5)}
    for c in range(5): p(f"ds_read_b128 {v(csqq[c],4)}, v{vG16} offset:{CS + 64*c}")
    K[0] = ra.alloc(10); Kp = ra.alloc(10)
    for c in range(5, 10): fold_sw(acc(0, c), csq[c], 0, K[0] + 2 * (c - 5))
    p("s_waitcnt lgkmcnt(0)\ns_barrier")
    ra.release(H, 16)
    for i in range(5):
        p(f"ds_read_b64 {v(Kp + 2*i,2)}, v{vL8} offset:{XCH + w*5120 + i*512}")
    for i in range(5):
        p(f"ds_read_b64 {v(V[i],2)}, v{vL8} offset:{XCH + w*5120 + (5+i)*512}")
    for c in range(10, 15): fold_un(acc(0, c), c, 0, V[c-10] + 2)
    ra.release(acc(0, 5), 40)
    for c in range(5, 10): ra.release(csq[c], 4)
    for t in range(3): ra.release(nq[t], 4); ra.release(aq[t], 4)
    ra.release(csv_base, 6)
    sGE = {1: 58, 2: 60, 3: 62}; sPar, sMa, sMb = 64, 66, 68
    p(f"s_mov_b32 s58, 0xffff0000\ns_mov_b32 s59, -1\ns_mov_b32 s60, 0\ns_mov_b32 s61, -1\ns_mov_b32 s62, 0\ns_mov_b32 s63, 0xffff0000")
    def lanemask(fn):
        m = sum(1 << l for l in range(64) if fn(l)); return m & 0xffffffff, m >> 32
    for sr, fn in ((sPar, lambda l: l & 1), (sMa, lambda l: 4*(l >> 4) + (l & 1) <= (l & 15)), (sMb, lambda l: 4*(l >> 4) + 2 + (l & 1) <= (l & 15))):
        lo, hi = lanemask(fn); p(f"s_mov_b32 s{sr}, 0x{lo:x}\ns_mov_b32 s{sr+1}, 0x{hi:x}")
    Qm = [ra.alloc(16) for _ in range(2)]
    tmp = ra.alloc(2)
    for t in range(2):
        for c in range(5):
            if c == 0: fold_sw(acc(t, c), csqq[c], t, Qm[t], scale=False)
            elif c == 4: fold_sw(acc(t, c), csqq[c], t, Qm[t] + 14, scale=False)
            else:
                a_ = acc(t, c)
                fold_sw(a_, csqq[c], t, a_, scale=False)
                for z in range(2):
                    p(f"v_cndmask_b32_e64 v{Qm[t] + 4*c + z}, 0, v{a_+z}, {s(sGE[c],2)}")
                    p(f"v_cndmask_b32_e64 v{Qm[t] + 4*(c-1) + 2 + z}, v{a_+z}, 0, {s(sGE[c],2)}")
    ra.release(acc(0, 0), 20); ra.release(acc(1, 0), 20)
    for c in range(5): ra.release(csqq[c], 4)
    bias = ra.alloc(4); sel = ra.alloc(4); sc = [ra.alloc(1), ra.alloc(1)]
    if w == 0:
        p(f"s_cmp_eq_u32 s{sG}, 0\ns_cselect_b32 s{sT0}, {fbits(-1e30)}, 0")
        for z in range(4): p(f"v_mov_b32 v{bias+z}, s{sT0}")
    p(f"v_mov_b32 v{tmp}, 0x0c0c0100\nv_mov_b32 v{tmp+1}, 0x01000c0c\nv_cndmask_b32_e64 v{sel+2}, v{tmp}, v{tmp+1}, {s(sPar,2)}")
    p(f"v_mov_b32 v{tmp}, 0x0c0c0302\nv_mov_b32 v{tmp+1}, 0x03020c0c\nv_cndmask_b32_e64 v{sel+3}, v{tmp}, v{tmp+1}, {s(sPar,2)}")
    p(f"v_mov_b32 v{tmp}, 0x0c0c0c0c")
    p(f"v_cndmask_b32_e64 v{sel}, v{sel+2}, v{tmp}, {s(sMa,2)}\nv_cndmask_b32_e64 v{sel+1}, v{sel+3}, v{tmp}, {s(sMb,2)}")
    p(f"v_cndmask_b32_e64 v{sel+2}, v{tmp}, v{sel+2}, {s(sMa,2)}\nv_cndmask_b32_e64 v{sel+3}, v{tmp}, v{sel+3}, {s(sMb,2)}")
    cexp = fbits(20 ** -0.5 * LOG2E)
    for t in range(2): p(f"v_mul_f32 v{sc[t]}, {cexp}, v{na[t]+1}")
    p("s_waitcnt lgkmcnt(0)")
    Sc = [[ra.alloc(4) for h in range(4)] for t in range(2)]
    Sp = [[ra.alloc(4) for h in range(4)] for t in range(2)]
    for t in (1, 0):
        kprev = K[0] if t == 1 else Kp
        for h in range(4):
            p(mfma(Sc[t][h], K[t] + 2*h, Qm[t] + 4*h, "0"))
            p(mfma(Sp[t][h], kprev + 2*h, Qm[t] + 4*h, v(bias, 4) if (t == 0 and w == 0) else "0"))
    P = [Qm[0], Qm[1]]
    for t in (1, 0):
        A = [Sc[t][h] for h in range(4)]; B = [Sc[t][h] + 2 for h in range(4)]
        for h in range(4):
            c_, q_ = Sc[t][h], Sp[t][h]
            p(f"v_cndmask_b32_e64 v{c_}, v{c_}, v{c_+1}, {s(sPar,2)}\nv_cndmask_b32_e64 v{q_}, v{q_}, v{q_+1}, {s(sPar,2)}")
            p(f"v_cndmask_b32_e64 v{c_+2}, v{c_+2}, v{c_+3}, {s(sPar,2)}\nv_cndmask_b32_e64 v{q_+2}, v{q_+2}, v{q_+3}, {s(sPar,2)}")
            p(f"v_cndmask_b32_e64 v{c_}, v{q_}, v{c_}, {s(sMa,2)}\nv_cndmask_b32_e64 v{c_+2}, v{q_+2}, v{c_+2}, {s(sMb,2)}")
        def transpose(R):
            return [f"v_permlane16_swap_b32 v{R[0]}, v{R[1]}", f"v_permlane16_swap_b32 v{R[2]}, v{R[3]}",
                    f"v_permlane32_swap_b32 v{R[0]}, v{R[2]}", f"v_permlane32_swap_b32 v{R[1]}, v{R[3]}"]
        ta, tb = transpose(A), transpose(B)
        for i in (0, 1): p(ta[i])
        for i in (0, 1): p(tb[i])
        for i in (2, 3): p(ta[i])
        for i in (2, 3): p(tb[i])
        m_, m2 = Sp[t][0], Sp[t][0] + 1
        p(f"v_max3_f32 v{m_}, v{A[0]}, v{A[1]}, v{A[2]}\nv_max3_f32 v{m2}, v{B[0]}, v{B[1]}, v{B[2]}")
        p(f"v_max3_f32 v{m_}, v{m_}, v{A[3]}, v{B[3]}\nv_max_f32 v{m_}, v{m_}, v{m2}")
        p(f"v_mul_f32 v{m_}, v{m_}, v{sc[t]}")
        for r in A + B: p(f"v_fma_f32 v{r}, v{r}, v{sc[t]}, -v{m_}")
        for r in A + B: p(f"v_exp_f32 v{r}, v{r}")
        s0, s1 = Sp[t][1], Sp[t][1] + 1
        p(f"v_add_f32 v{s0}, v{A[0]}, v{A[1]}\nv_add_f32 v{s1}, v{A[2]}, v{A[3]}\nv_add_f32 v{m_}, v{B[0]}, v{B[1]}\nv_add_f32 v{m2}, v{B[2]}, v{B[3]}")
        p(f"v_add_f32 v{s0}, v{s0}, v{s1}\nv_add_f32 v{m_}, v{m_}, v{m2}\nv_add_f32 v{s0}, v{s0}, v{m_}\nv_rcp_f32 v{s0}, v{s0}")
        for r in A + B: p(f"v_mul_f32 v{r}, v{r}, v{s0}")
        for i in range(4): p(f"v_cvt_pk_bf16_f32 v{A[i]}, v{A[i]}, v{B[i]}")
        for l in transpose(A): p(l)
        for h in range(4):
            for z in range(4):
                p(f"v_perm_b32 v{P[t] + 4*h + z}, v{A[h]}, v{A[h]}, v{sel+z}")
        for h in range(4):
            p(mfma(Sc[t][h], V[h] + 2*t, P[t] + 4*h, "0"))
            p(mfma(Sp[t][h], V[h+1] + 2*t, P[t] + 4*h, "0"))
    vL16 = ra.alloc(1)
    p(f"v_lshlrev_b32 v{vL16}, 4, v0")
    p(f"s_lshl_b32 s{sT0}, s{sG}, 3\ns_add_u32 s{sT0}, s{sT0}, {2*w}\ns_lshl_b32 s{sT0}, s{sT0}, 11")
    p(f"s_add_u32 s{sT1}, s{sJ}, 24\ns_lshl_b32 s{sT1}, s{sT1}, 18\ns_add_u32 s{sT1}, s{sT1}, s{sT0}")
    p(f"s_lshr_b32 s{sT2}, s{sJ}, 2\ns_add_u32 s{sT2}, s{sT2}, 32\ns_lshl_b32 s{sT2}, s{sT2}, 18\ns_add_u32 s{sT2}, s{sT2}, s{sT0}")
    p(f"s_and_b32 s{sT3}, s{sJ}, 2\ns_lshl_b32 s{sT3}, s{sT3}, 9\ns_add_u32 s{sT2}, s{sT2}, s{sT3}")
    p(f"s_and_b32 s{sT3}, s{sJ}, 1\ns_lshl_b32 s{sT3}, s{sT3}, 3\ns_add_u32 s{sT2}, s{sT2}, s{sT3}")
    for t in (1, 0):
        O = K[t]
        for c in range(5):
            if c == 0: src = Sc[t][0]
            elif c == 4: src = Sp[t][3]
            else:
                src = Sc[t][c]
                for z in range(4):
                    p(f"v_cndmask_b32_e64 v{src+z}, v{Sp[t][c-1]+z}, v{src+z}, {s(sGE[c],2)}")
            p(f"v_cvt_pk_bf16_f32 v{O+2*c}, v{src}, v{src+1}\nv_cvt_pk_bf16_f32 v{O+2*c+1}, v{src+2}, v{src+3}")
        p(f"buffer_store_dwordx4 {v(O,4)}, v{vL16}, s[{SWS}:{SWS+3}], s{sT1} offen offset:{2048*t}")
        p(f"buffer_store_dwordx4 {v(O+4,4)}, v{vL16}, s[{SWS}:{SWS+3}], s{sT1} offen offset:{2048*t+1024}")
        p(f"buffer_store_dwordx2 {v(O+8,2)}, v{vL16}, s[{SWS}:{SWS+3}], s{sT2} offen offset:{2048*t}")
    stamp(p, 3)
    if STAMP: p("s_waitcnt vmcnt(0)")
    stamp(p, 4)
    stamp_flush(p, 5, STAMP_OFF)
    p("s_endpgm")

def computeF(p, tm):
    L = f"LFC{tm}"
    ACC = 24; CSA = 120; BW = 132; XF = 148; ONE = 180
    acc = lambda t, c: ACC + (c * 4 + t) * 4
    vW, vWl, vX, vXl = [4, 5, 6, 7], [8, 9, 10, 11], [12, 13], [14, 15]
    sWs, sXs, sCnt, sTn = 55, 56, 57, 58
    NB, LA = 4, 3
    xf = lambda e, i: XF + (e * 4 + i) * 4
    xoff = [(64 * tm + 16 * i) * 128 for i in range(4)]
    p(f"s_lshr_b32 s{sTn}, s{sWAVE}, 1")
    xfrag_lane(p, vXl[0], vXl[1])
    p(f"v_lshrrev_b32 v1, 2, v0\nv_mul_u32_u24 v1, 384, v1\nv_and_b32 v2, 3, v0\nv_lshl_add_u32 v1, v2, 3, v1\nv_bfe_u32 v2, v0, 3, 2")
    p(f"s_mul_i32 s{sT0}, s{sTn}, 6")
    for i in range(4):
        p(f"s_add_u32 s{sT1}, s{sT0}, {i}\nv_xor_b32 v3, s{sT1}, v2\nv_lshl_add_u32 v{vWl[i]}, v3, 5, v1")
    p(f"s_mov_b32 s{sWs}, {FWR}\ns_mov_b32 s{sXs}, {FXR}")
    for i in range(4): p(f"v_add_u32 v{vW[i]}, s{sWs}, v{vWl[i]}")
    p(f"v_add_u32 v{vX[0]}, s{sXs}, v{vXl[0]}\nv_add_u32 v{vX[1]}, s{sXs}, v{vXl[1]}")
    for r in range(ACC, BW): p(f"v_mov_b32 v{r}, 0")
    for r in range(ONE, ONE + 4): p(f"v_mov_b32 v{r}, 0x3f803f80")
    p("s_waitcnt lgkmcnt(0)")
    srd(p, SWS, sWS, ACT_BYTES)
    p("s_barrier")
    stamp(p, 1)
    def bread(slot, c, j): return f"ds_read_b64_tr_b16 {v(BW + 4*slot + 2*j, 2)}, v{vW[c & 3]} offset:{(c >> 2)*128 + j*6144}"
    for i in range(4): p(f"ds_read_b128 {v(xf(0,i),4)}, v{vX[0]} offset:{xoff[i]}")
    for c in range(LA):
        p(bread(c, c, 0)); p(bread(c, c, 1))
    p("s_waitcnt lgkmcnt(0)")
    def body(em, tr, it):
        for e in range(2):
            for c in range(6):
                n = 6 * e + c; slot = n % NB
                if c == 6 - LA:
                    em(f"s_add_u32 s{sWs}, s{sWs}, {FWS}"); em(f"s_cmp_ge_u32 s{sWs}, {FWR + 5*FWS}"); em(f"s_cselect_b32 s{sWs}, {FWR}, s{sWs}")
                    for i in range(4): em(f"v_add_u32 v{vW[i]}, s{sWs}, v{vWl[i]}")
                    if e == 1:
                        em(f"s_add_u32 s{sXs}, s{sXs}, {FXS}"); em(f"s_cmp_ge_u32 s{sXs}, {FXR + 3*FXS}"); em(f"s_cselect_b32 s{sXs}, {FXR}, s{sXs}")
                        em(f"v_add_u32 v{vX[0]}, s{sXs}, v{vXl[0]}"); em(f"v_add_u32 v{vX[1]}, s{sXs}, v{vXl[1]}")
                    em("s_barrier")
                tags = {("b", it, n, 0), ("b", it, n, 1)}
                if c == 0: tags |= {("x", it, e, i) for i in range(4)}
                k = tr.need(tags)
                if k is not None: em(f"s_waitcnt lgkmcnt({k})")
                b = BW + 4 * slot
                n2 = n + LA; it2 = it + n2 // 12; n2 %= 12; c2 = n2 % 6
                xr = []
                if c in (6 - LA, 6 - LA + 1): xr = [2 * (c - (6 - LA)), 2 * (c - (6 - LA)) + 1]
                for t in range(4):
                    em(mfma(acc(t, c), b, xf(e, t)))
                    if t < 2:
                        em(bread(n2 % NB, c2, t)); tr.issue(("b", it2, n2, t))
                    elif xr:
                        i = xr[t - 2]; e2 = 1 - e
                        em(f"ds_read_b128 {v(xf(e2,i),4)}, v{vX[e2]} offset:{xoff[i]}"); tr.issue(("x", it + e, e2, i))
                if c // 3 == tm: em(mfma(CSA + 4 * (c % 3), b, ONE))
    steady_loop(p, body, f"{L}_loop", sCnt, 10)
    stamp(p, 2)
    vG16, vL4 = 1, 2
    p(f"s_mul_i32 s{sT0}, s{sTn}, 384")
    p(f"v_and_b32 v{vG16}, 0x30, v0\nv_add_u32 v{vG16}, s{sT0}, v{vG16}\nv_and_b32 v{vL4}, 15, v0\nv_lshlrev_b32 v{vL4}, 2, v{vL4}")
    p("s_waitcnt lgkmcnt(0)")
    p("s_mov_b32 exec_lo, 0x00010001\ns_mov_b32 exec_hi, 0x00010001")
    for i in range(3): p(f"ds_write_b128 v{vG16}, {v(CSA + 4*i, 4)} offset:{CS + 64*(3*tm + i)}")
    p("s_mov_b64 exec, -1")
    p("s_waitcnt lgkmcnt(0)\ns_barrier")
    ra = RA(BW, 256)
    cs = {}
    for c in range(6):
        if c // 3 == tm: cs[c] = CSA + 4 * (c % 3)
        else:
            cs[c] = ra.alloc(4); p(f"ds_read_b128 {v(cs[c],4)}, v{vG16} offset:{CS + 64*c}")
    nz = [ra.alloc(2) for _ in range(4)]; sd = [ra.alloc(2) for _ in range(4)]
    for t in range(4):
        ro = 4 * (64 * tm + 16 * t)
        p(f"ds_read_b32 v{nz[t]}, v{vL4} offset:{ST_NM + ro}\nds_read_b32 v{nz[t]+1}, v{vL4} offset:{ST_A + ro}\nds_read_b32 v{sd[t]}, v{vL4} offset:{ST_SD + ro}")
    vL16 = ra.alloc(1)
    p(f"v_lshlrev_b32 v{vL16}, 4, v0")
    p(f"s_lshl_b32 s{sT0}, s{sG}, 3\ns_add_u32 s{sT0}, s{sT0}, {4*tm}\ns_lshl_b32 s{sT0}, s{sT0}, 11")
    p(f"s_mul_i32 s{sT1}, s{sJ}, 6\ns_mul_i32 s{sT2}, s{sTn}, 3\ns_add_u32 s{sT1}, s{sT1}, s{sT2}")
    sA = [[60, 61], [62, 63], [64, 65]]
    for kp in range(3):
        p(f"s_add_u32 s{sT2}, s{sT1}, {kp}\ns_lshr_b32 s{sT3}, s{sT2}, 1\ns_lshl_b32 s{sT3}, s{sT3}, 18\ns_and_b32 s{sT2}, s{sT2}, 1\ns_lshl_b32 s{sT2}, s{sT2}, 10")
        p(f"s_add_u32 s{sT2}, s{sT2}, s{sT3}\ns_add_u32 s{sA[kp][0]}, s{sT2}, s{sT0}\ns_add_u32 s{sA[kp][1]}, s{sA[kp][0]}, 4096")
    p("s_waitcnt lgkmcnt(0)")
    Z = [ra.alloc(8) for _ in range(2)]; O = [ra.alloc(4) for _ in range(4)]
    n = 0
    for kp in range(3):
        for t in range(4):
            z = Z[n & 1]; o = O[n & 3]; n += 1
            prs = [(acc(t, 2*kp + i) + h, cs[2*kp + i] + h, z + 4*i + h) for i in range(2) for h in (0, 2)]
            for a_, c_, z_ in prs: p(f"v_pk_fma_f32 {v(a_,2)}, {v(c_,2)}, {v(nz[t],2)}, {v(a_,2)} op_sel_hi:[1,0,1]")
            for a_, c_, z_ in prs: p(f"v_pk_mul_f32 {v(z_,2)}, {v(a_,2)}, {v(nz[t],2)} op_sel:[0,1] op_sel_hi:[1,1]")
            for i in range(8): p(f"v_exp_f32 v{z+i}, v{z+i}")
            for a_, c_, z_ in prs: p(f"v_pk_fma_f32 {v(z_,2)}, {v(z_,2)}, {v(sd[t],2)}, {v(sd[t],2)} op_sel_hi:[1,0,0]")
            for i in range(8): p(f"v_rcp_f32 v{z+i}, v{z+i}")
            for a_, c_, z_ in prs: p(f"v_pk_mul_f32 {v(a_,2)}, {v(a_,2)}, {v(z_,2)}")
            for i, (a_, c_, z_) in enumerate(prs): p(f"v_cvt_pk_bf16_f32 v{o+i}, v{a_}, v{a_+1}")
            p(f"buffer_store_dwordx4 {v(o,4)}, v{vL16}, s[{SWS}:{SWS+3}], s{sA[kp][t >> 1]} offen offset:{2048*(t & 1)}")
    stamp(p, 3)
    if STAMP: p("s_waitcnt vmcnt(0)")
    stamp(p, 4)
    stamp_flush(p, 5, STAMP_OFF)
    p("s_endpgm")

def kernel1():
    p = Prog()
    prologue(p, "L1_end")
    p(f"s_lshr_b32 s{sT0}, s{sXCD}, 1\ns_lshl_b32 s{sT0}, s{sT0}, 2\ns_and_b32 s{sT1}, s{sI}, 3\ns_add_u32 s{sG}, s{sT0}, s{sT1}")
    p(f"s_and_b32 s{sT0}, s{sXCD}, 1\ns_lshl_b32 s{sT0}, s{sT0}, 2\ns_bfe_u32 s{sT1}, s{sI}, 0x20002\ns_add_u32 s{sJ}, s{sT0}, s{sT1}")
    p(f"s_cmp_ge_u32 s{sI}, 16\ns_cbranch_scc1 L1_F")
    p(f"s_cmp_ge_u32 s{sWAVE}, 4\ns_cbranch_scc1 L1_QL")
    for w in range(1, 4): p(f"s_cmp_eq_u32 s{sWAVE}, {w}\ns_cbranch_scc1 L1_QC{w}")
    computeQ(p, 0)
    for w in range(1, 4):
        p.label(f"L1_QC{w}"); computeQ(p, w)
    p.label("L1_QL"); loader1(p, "Q")
    p.label("L1_F")
    p(f"s_cmp_ge_u32 s{sWAVE}, 4\ns_cbranch_scc1 L1_FL")
    p(f"s_bitcmp1_b32 s{sWAVE}, 0\ns_cbranch_scc1 L1_FC1")
    computeF(p, 0)
    p.label("L1_FC1"); computeF(p, 1)
    p.label("L1_FL"); loader1(p, "F")
    p.label("L1_end")
    p("s_endpgm")
    p.pad()
    return p

sROW, sCB = 55, 56
def tilemap2(p, F):
    if F:
        p(f"s_sub_u32 s{sT0}, s{sI}, 16")
        p(f"s_lshr_b32 s{sT1}, s{sT0}, 2\ns_and_b32 s{sT2}, s{sT0}, 3")
        p(f"s_sub_u32 s{sT3}, s{sT0}, 6\ns_lshr_b32 s{sT3}, s{sT3}, 1\ns_and_b32 s{sROW}, s{sT0}, 1")
        p(f"s_cmp_lt_u32 s{sT0}, 12\ns_cselect_b32 s{sCB}, s{sT1}, s{sT3}\ns_cselect_b32 s{sROW}, s{sT2}, s{sROW}")
        p(f"s_mul_i32 s{sROW}, s{sROW}, 6")
    else:
        p(f"s_lshr_b32 s{sT1}, s{sI}, 1\ns_and_b32 s{sT2}, s{sI}, 1\ns_add_u32 s{sT2}, s{sT2}, 6")
        p(f"s_cmp_ge_u32 s{sI}, 11\ns_cselect_b32 s{sT3}, 4, 3\ns_cselect_b32 s{sT0}, 8, 3\ns_sub_u32 s{sT0}, s{sI}, s{sT0}")
        p(f"s_cmp_lt_u32 s{sI}, 6\ns_cselect_b32 s{sCB}, s{sT1}, s{sT3}\ns_cselect_b32 s{sROW}, s{sT2}, s{sT0}")
        p(f"s_lshl_b32 s{sROW}, s{sROW}, 2")
    p(f"s_lshr_b32 s{sT0}, s{sXCD}, 1\ns_lshl_b32 s{sT0}, s{sT0}, 5\ns_add_u32 s{sROW}, s{sROW}, s{sT0}")
    p(f"s_and_b32 s{sT0}, s{sXCD}, 1\ns_mul_i32 s{sT0}, s{sT0}, 5\ns_add_u32 s{sCB}, s{sCB}, s{sT0}")

def p2geom(F):
    NT = 6 if F else 4
    AS = NT * 2048; SS = AS + 8192; NS = 7 if F else 8
    return NT, AS, SS, NS

def loader2(p, F):
    NT, AS, SS, NS = p2geom(F)
    L = "L2FL" if F else "L2QL"
    NA = NT // 2
    sW, sAk, sWk, sWinc, sL, sLEnd, sSig, sWr1, sWr2 = range(57, 66)
    vA, vW0, vW1 = 10, 11, 12
    tilemap2(p, F)
    p(f"s_sub_u32 s{sW}, s{sWAVE}, 4")
    p(f"v_lshlrev_b32 v{vA}, 4, v0")
    p(f"v_lshrrev_b32 v1, 3, v0\nv_mul_u32_u24 v1, 1280, v1\nv_lshrrev_b32 v2, 4, v0\nv_lshlrev_b32 v2, 1, v2\nv_and_b32 v3, 7, v0\nv_xor_b32 v2, v2, v3")
    p(f"v_lshl_add_u32 v{vW0}, v2, 4, v1\nv_add_u32 v{vW1}, 9216, v{vW0}")
    p(f"s_lshl_b32 s{sAk}, s{sROW}, 11\ns_mul_i32 s{sT0}, s{sW}, {NA*1024}\ns_add_u32 s{sAk}, s{sAk}, s{sT0}")
    p(f"s_lshl_b32 s{sT1}, s{sCB}, 7\ns_mul_i32 s{sT2}, s{sW}, {16*1280}\ns_add_u32 s{sWk}, s{sT1}, s{sT2}\ns_mov_b32 s{sWr1}, s{sWk}")
    p(f"s_mul_i32 s{sT2}, s{sW}, {80*1280}\ns_add_u32 s{sWr2}, s{sT1}, s{sT2}\ns_add_u32 s{sWr2}, s{sWr2}, {64*1280}")
    p(f"s_mov_b32 s{sWinc}, {64*1280}\ns_mov_b32 s{sL}, 0\ns_mov_b32 s{sSig}, 0")
    sLa, sLw = 66, 67
    p(f"s_mov_b32 s{sLa}, s{sT0}\ns_lshl_b32 s{sLw}, s{sW}, 11\ns_add_u32 s{sLw}, s{sLw}, {AS}")
    p("s_waitcnt lgkmcnt(0)")
    srd(p, SWS, sWS, ACT_BYTES)
    srd(p, SW2, sW2, W2_BYTES)
    def issue():
        p(f"s_add_u32 m0, s{sL}, s{sLw}")
        p(f"buffer_load_dwordx4 v{vW0}, s[{SW2}:{SW2+3}], s{sWk} offen lds")
        p(f"buffer_load_dwordx4 v{vW1}, s[{SW2}:{SW2+3}], s{sWk} offen offset:1024 lds")
        p(f"s_add_u32 m0, s{sL}, s{sLa}")
        for i in range(NA):
            p(f"buffer_load_dwordx4 v{vA}, s[{SWS}:{SWS+3}], s{sAk} offen offset:{1024*i} lds")
        p(f"s_add_u32 s{sAk}, s{sAk}, 262144\ns_add_u32 s{sWk}, s{sWk}, s{sWinc}\ns_add_u32 s{sSig}, s{sSig}, 1")
        p(f"s_add_u32 s{sL}, s{sL}, {SS}\ns_cmp_ge_u32 s{sL}, {NS*SS}\ns_cselect_b32 s{sL}, 0, s{sL}")
        p(f"s_cmp_eq_u32 s{sSig}, 24\ns_cselect_b32 s{sWk}, s{sWr1}, s{sWk}\ns_cselect_b32 s{sWinc}, {80*1280}, s{sWinc}")
        p(f"s_cselect_b32 s{SW2}, s{sWO}, s{SW2}\ns_cselect_b32 s{SW2+1}, s{sWO+1}, s{SW2+1}\ns_cselect_b32 s{SW2+2}, {WO_BYTES}, s{SW2+2}")
        p(f"s_cmp_eq_u32 s{sSig}, 32\ns_cselect_b32 s{sWk}, s{sWr2}, s{sWk}\ns_cselect_b32 s{sWinc}, {320*1280}, s{sWinc}")
    GI = NA + 2
    p.label(f"{L}_pro")
    issue()
    p(f"s_cmp_lt_u32 s{sSig}, {NS}\ns_cbranch_scc1 {L}_pro")
    stamp(p, 1)
    p(f"s_waitcnt vmcnt({(NS-1)*GI})\ns_barrier")
    stamp(p, 2)
    p.label(f"{L}_loop")
    p(f"s_waitcnt vmcnt({(NS-2)*GI})\ns_barrier")
    issue()
    p(f"s_cmp_lt_u32 s{sSig}, 34\ns_cbranch_scc1 {L}_loop")
    for k in range(NS - 2, -1, -1):
        p(f"s_waitcnt vmcnt({k*GI})\ns_barrier")
    p("s_barrier")
    stamp(p, 3)
    stamp_flush(p, 4, STAMP_OFF + (1 << 20))
    p("s_endpgm")

def compute2(p, F):
    NT, AS, SS, NS = p2geom(F)
    L = "L2FC" if F else "L2QC"
    NTW = NT // 2
    ACC = 16
    acc = lambda t, c: ACC + (t * 2 + c) * 4
    FR = 48; PER = (NTW + 2) * 4
    af = lambda e, kk, t: FR + (e * 2 + kk) * PER + t * 4
    bf = lambda e, kk, c: FR + (e * 2 + kk) * PER + (NTW + c) * 4
    XR_ = 140
    vA, vB, vAl, vBl, vO = 4, [5, 6], 7, [8, 9], 10
    sSl, sCnt, sTm, sTn = 57, 58, 59, 60
    tilemap2(p, F)
    p(f"s_and_b32 s{sTm}, s{sWAVE}, 1\ns_lshr_b32 s{sTn}, s{sWAVE}, 1")
    p(f"s_mul_i32 s{sT0}, s{sTm}, {NTW*2048}\nv_lshlrev_b32 v1, 4, v0\nv_add_u32 v{vAl}, s{sT0}, v1")
    p(f"v_lshrrev_b32 v1, 2, v0\nv_lshlrev_b32 v1, 7, v1\nv_and_b32 v2, 3, v0\nv_lshl_add_u32 v1, v2, 3, v1\nv_add_u32 v1, {AS}, v1\nv_bfe_u32 v2, v0, 3, 2")
    p(f"s_lshl_b32 s{sT0}, s{sTn}, 1")
    for c in range(2):
        p(f"s_add_u32 s{sT1}, s{sT0}, {c}\nv_xor_b32 v3, s{sT1}, v2\nv_lshl_add_u32 v{vBl[c]}, v3, 5, v1")
    for r in range(ACC, ACC + NTW * 8): p(f"v_mov_b32 v{r}, 0")
    p(f"v_and_b32 v1, 15, v0\nv_mul_u32_u24 v1, 1280, v1\nv_lshrrev_b32 v2, 4, v0\nv_lshl_add_u32 v{vO}, v2, 3, v1")
    sO = [61, 62, 63]
    p(f"s_mul_i32 s{sT0}, s{sTm}, {NTW}\ns_add_u32 s{sT0}, s{sT0}, s{sROW}\ns_mul_i32 s{sT0}, s{sT0}, {16*1280}")
    p(f"s_lshl_b32 s{sT1}, s{sCB}, 7\ns_lshl_b32 s{sT2}, s{sTn}, 6\ns_add_u32 s{sT0}, s{sT0}, s{sT1}\ns_add_u32 s{sO[0]}, s{sT0}, s{sT2}")
    for t in range(1, NTW): p(f"s_add_u32 s{sO[t]}, s{sO[t-1]}, {16*1280}")
    p(f"s_mov_b32 s{sSl}, 0")
    p("s_waitcnt lgkmcnt(0)")
    srd(p, SX, sX, X_BYTES); srd(p, SOUT, sOUT, X_BYTES)
    for t in range(NTW):
        for c in range(2):
            p(f"buffer_load_dwordx2 {v(XR_ + (t*2+c)*2, 2)}, v{vO}, s[{SX}:{SX+3}], s{sO[t]} offen offset:{32*c}")
    def reads(e):
        out = []
        for kk in range(2):
            for c in range(2):
                for j in range(2):
                    out.append(f"ds_read_b64_tr_b16 {v(bf(e,kk,c) + 2*j, 2)}, v{vB[c]} offset:{kk*4096 + j*2048}")
            for t in range(NTW):
                out.append(f"ds_read_b128 {v(af(e,kk,t),4)}, v{vA} offset:{t*2048 + kk*1024}")
        return out
    def setaddr():
        p(f"v_add_u32 v{vA}, s{sSl}, v{vAl}\nv_add_u32 v{vB[0]}, s{sSl}, v{vBl[0]}\nv_add_u32 v{vB[1]}, s{sSl}, v{vBl[1]}")
        p(f"s_add_u32 s{sSl}, s{sSl}, {SS}\ns_cmp_ge_u32 s{sSl}, {NS*SS}\ns_cselect_b32 s{sSl}, 0, s{sSl}")
    setaddr()
    p("s_barrier")
    stamp(p, 1)
    for l in reads(0): p(l)
    p(f"s_mov_b32 s{sCnt}, 17")
    p.label(f"{L}_loop")
    for e in range(2):
        setaddr()
        p("s_waitcnt lgkmcnt(0)\ns_barrier")
        rd = reads(1 - e)
        mm = [mfma(acc(t, c), bf(e, kk, c), af(e, kk, t)) for kk in range(2) for t in range(NTW) for c in range(2)]
        per = -(-len(rd) // len(mm))
        for m_ in mm:
            for _ in range(per):
                if rd: p(rd.pop(0))
            p(m_)
    p(f"s_sub_u32 s{sCnt}, s{sCnt}, 1\ns_cmp_lg_u32 s{sCnt}, 0\ns_cbranch_scc1 {L}_loop")
    stamp(p, 2)
    p("s_waitcnt vmcnt(0) lgkmcnt(0)")
    T = 170
    for t in range(NTW):
        for c in range(2):
            x_ = XR_ + (t*2+c)*2; a_ = acc(t, c); u = T + (t*2+c)*4
            p(f"v_lshlrev_b32 v{u}, 16, v{x_}\nv_and_b32 v{u+1}, 0xffff0000, v{x_}\nv_lshlrev_b32 v{u+2}, 16, v{x_+1}\nv_and_b32 v{u+3}, 0xffff0000, v{x_+1}")
    for t in range(NTW):
        for c in range(2):
            x_ = XR_ + (t*2+c)*2; a_ = acc(t, c); u = T + (t*2+c)*4
            p(f"v_pk_add_f32 {v(u,2)}, {v(u,2)}, {v(a_,2)}\nv_pk_add_f32 {v(u+2,2)}, {v(u+2,2)}, {v(a_+2,2)}")
            p(f"v_cvt_pk_bf16_f32 v{x_}, v{u}, v{u+1}\nv_cvt_pk_bf16_f32 v{x_+1}, v{u+2}, v{u+3}")
            p(f"buffer_store_dwordx2 {v(x_,2)}, v{vO}, s[{SOUT}:{SOUT+3}], s{sO[t]} offen offset:{32*c}")
    stamp(p, 3)
    if STAMP: p("s_waitcnt vmcnt(0)")
    stamp(p, 4)
    stamp_flush(p, 5, STAMP_OFF + (1 << 20))
    p("s_endpgm")

def kernel2():
    p = Prog()
    prologue(p, "L2_end")
    p(f"s_cmp_ge_u32 s{sI}, 16\ns_cbranch_scc1 L2_F")
    p(f"s_cmp_ge_u32 s{sWAVE}, 4\ns_cbranch_scc1 L2_QL")
    compute2(p, False)
    p.label("L2_QL"); loader2(p, False)
    p.label("L2_F")
    p(f"s_cmp_ge_u32 s{sWAVE}, 4\ns_cbranch_scc1 L2_FL")
    compute2(p, True)
    p.label("L2_FL"); loader2(p, True)
    p.label("L2_end")
    p("s_endpgm")
    p.pad()
    return p

def kd(name):
    return f""".amdhsa_kernel {name}
  .amdhsa_next_free_vgpr 256
  .amdhsa_next_free_sgpr 102
  .amdhsa_accum_offset 256
  .amdhsa_group_segment_fixed_size 0
  .amdhsa_kernarg_size 72
  .amdhsa_user_sgpr_count 2
  .amdhsa_user_sgpr_kernarg_segment_ptr 1
  .amdhsa_system_sgpr_workgroup_id_x 1
  .amdhsa_float_denorm_mode_32 3
.end_amdhsa_kernel
"""

if __name__ == "__main__":
    for n in range(1024):
        assert (n * 2185) >> 16 == n // 30 and (n * 2731) >> 16 == n // 24
    for n in range(80): assert (n * 205) >> 11 == n // 10
    k1, k2 = kernel1(), kernel2()
    out = [f"; @launch kernel=p1_kernel grid=(256,1,1) block=(512,1,1) lds={LDS1}",
           f"; @launch kernel=p2_kernel grid=(256,1,1) block=(512,1,1) lds={7*20480}",
           '.amdgcn_target "amdgcn-amd-amdhsa--gfx950"', ".text"]
    for nm, k in (("p1_kernel", k1), ("p2_kernel", k2)):
        out += [f".globl {nm}", ".p2align 8", f".type {nm},@function", f"{nm}:", k.text()]
    out += ['.section .rodata,"a"', ".p2align 6", kd("p1_kernel"), ".p2align 6", kd("p2_kernel")]
    dst = [a for a in sys.argv[1:] if not a.startswith("--")]
    open(dst[0] if dst else f"cdna_kernels/{NAME}.s", "w").write("\n".join(out))
```
